```python
import torch

def _softmax(x, axis=-1):
    return torch.softmax(x, dim=axis)
def _gelu(x):
    return torch.nn.functional.gelu(x, approximate="tanh")
def _silu(x):
    return torch.nn.functional.silu(x)
def _sigmoid(x):
    return torch.sigmoid(x)
def _layernorm(x, axis=-1, eps=1e-5):
    m = x.mean(dim=axis, keepdim=True)
    v = x.var(dim=axis, keepdim=True, unbiased=False)
    return (x - m) / torch.sqrt(v + eps)
def _scatter_add(tgt, idx, src, axis=0):
    return tgt.clone().index_add_(axis, idx, src)
def _segment_sum(src, seg, n):
    out = torch.zeros((n,) + src.shape[1:], dtype=src.dtype)
    return out.index_add_(0, seg, src)
def _pad(x, pw):
    flat = tuple(v for pair in reversed(pw) for v in pair)
    return torch.nn.functional.pad(x, flat)

kernel_name = 'concat_heads__grouped_kv_mqa__linear_kernel_hedgehog__prompt'

def setup_inputs():

    _w = (lambda a: (lambda t: t.to(torch.bfloat16) if t.is_floating_point() else t)(torch.as_tensor(a)))
    def _A_setup():
        B, S, D, H = 1, 2048, 512, 32
        Dh = D // H
        return {
            "x": _w((lambda *s: torch.randn(*s, dtype=torch.bfloat16) * 0.05)(B, S, D)),
            "wq": _w((lambda *s: torch.randn(*s, dtype=torch.bfloat16) * 1.6)(D, H * Dh)),
            "wk": _w((lambda *s: torch.randn(*s, dtype=torch.bfloat16) * 1.6)(D, Dh)),
            "wv": _w((lambda *s: torch.randn(*s, dtype=torch.bfloat16) * 1.6)(D, Dh)),
            "wo": _w((lambda *s: torch.randn(*s, dtype=torch.bfloat16) * 1.6)(H * Dh, D)),
        }
    _A_in = _A_setup()

    def _B_setup():
        B, S, D, H = 1, 2048, 512, 32
        Dh = D // H
        return {
            "x": _w((lambda *s: torch.randn(*s, dtype=torch.bfloat16) * 0.2)(B, S, D)),
            "wqkv": _w((lambda *s: torch.randn(*s, dtype=torch.bfloat16) * 1.6)(D, 3 * D)),
            "w_phi": _w((lambda *s: torch.randn(*s, dtype=torch.bfloat16) * 1.6)(H, Dh, Dh) * (Dh ** -0.5)),
            "wo": _w((lambda *s: torch.randn(*s, dtype=torch.bfloat16) * 0.8)(D, D)),
        }
    _B_in = _B_setup()

    return {
        "A_x": _A_in["x"],
        "A_wq": _A_in["wq"],
        "A_wk": _A_in["wk"],
        "A_wv": _A_in["wv"],
        "A_wo": _A_in["wo"],
        "B_x": _B_in["x"],
        "B_wqkv": _B_in["wqkv"],
        "B_w_phi": _B_in["w_phi"],
        "B_wo": _B_in["wo"],
    }

def reference(A_x, A_wq, A_wk, A_wv, A_wo, B_x, B_wqkv, B_w_phi, B_wo):
    def _A_ref(x, wq, wk, wv, wo):
        B, S, D = x.shape
        H = 32
        Dh = D // H
        q = (lambda x, *d: x.permute(*d))((x @ wq).reshape(B, S, H, Dh), 0, 2, 1, 3)
        k = x @ wk
        v = x @ wv
        scores = torch.einsum("bhqd,bkd->bhqk", q, k) * (Dh ** -0.5)
        p = _softmax(scores, axis=-1)
        o = torch.einsum("bhqk,bkd->bhqd", p, v)
        return (lambda x, *d: x.permute(*d))(o, 0, 2, 1, 3).reshape(B, S, H * Dh) @ wo

    def _B_ref(x, wqkv, w_phi, wo):
        B, S, D = x.shape
        H = 32; Dh = D // H
        qkv = (lambda x, *d: x.permute(*d))((x @ wqkv).reshape(B, S, 3, H, Dh), 2, 0, 3, 1, 4)
        q, k, v = qkv[0], qkv[1], qkv[2]
        pq = torch.einsum("bhsd,hdf->bhsf", q, w_phi)
        pk = torch.einsum("bhsd,hdf->bhsf", k, w_phi)
        phi_q = torch.concatenate([_softmax(pq, axis=-1), _softmax(-pq, axis=-1)], axis=-1)
        phi_k = torch.concatenate([_softmax(pk, axis=-1), _softmax(-pk, axis=-1)], axis=-1)
        kv = torch.einsum("bhsf,bhsd->bhfd", phi_k, v)
        z  = torch.einsum("bhsf->bhf", phi_k)
        num = torch.einsum("bhqf,bhfd->bhqd", phi_q, kv)
        den = torch.einsum("bhqf,bhf->bhq", phi_q, z)[..., None] + 1e-6
        o = num / den
        return (lambda x, *d: x.permute(*d))(o, 0, 2, 1, 3).reshape(B, S, D) @ wo

    a = _A_ref(A_x, A_wq, A_wk, A_wv, A_wo)
    b = _B_ref(B_x, B_wqkv, B_w_phi, B_wo)
    return torch.concatenate([a, b], axis=-1)
```

```python
NAME='concat_heads__grouped_kv_mqa__linear_kernel_hedgehog__prompt'
WS_QA=0; WS_QB=0x200000; WS_K=0x400000; WS_V=0x410000; WS_KVP=0x500000; WS_O=0x800000; WS_SIZE=0x1000000
LOG2E=0x3fb8aa3b
class Asm:
    def __init__(s): s.l=[]
    def __call__(s,t):
        for x in t.split('\n'):
            x=x.strip()
            if x: s.l.append(x if x.endswith(':') else '  '+x)
    def text(s): return '\n'.join(s.l)+'\n'
def R(b,n,t='v'): return f"{t}[{b}:{b+n-1}]"
def mfma(d,a,b,c): return f"v_mfma_f32_32x32x16_bf16 {R(d,16)}, {R(a,4)}, {R(b,4)}, {c if isinstance(c,str) else R(c,16)}"
def srd(a,s,ptr,size):
    a(f"s_mov_b32 s{s}, s{ptr}\ns_mov_b32 s{s+1}, s{ptr+1}\ns_mov_b32 s{s+2}, {size}\ns_mov_b32 s{s+3}, 0x00020000")
def cvt(a,d,s,n):
    for i in range(n): a(f"v_cvt_pk_bf16_f32 v{d+i}, v{s+2*i}, v{s+2*i+1}")
def load_wphi(a,dst,voff,s_srd,soff):
    for e in range(8):
        off=(8*(e>>2)+(e&3))*32
        a(f"buffer_load_ushort v{dst+e}, v{voff}, s[{s_srd}:{s_srd+3}], {soff} offen offset:{off}")
def pack_wphi(a,dst,src,n,vsign):
    for r in range(n): a(f"v_lshl_or_b32 v{dst+r}, v{src+2*r+1}, 16, v{src+2*r}")
    for r in range(n): a(f"v_xor_b32 v{dst+r}, v{dst+r}, v{vsign}")
def softmax_multi(a,Ds,T,sl2e):
    n=len(Ds)
    def t(i,k): return T+4*i+k
    for i,D in enumerate(Ds):
        for s in range(2):
            b=D+8*s
            a(f"v_max3_f32 v{t(i,s)}, v{b}, v{b+1}, v{b+2}\nv_max3_f32 v{t(i,2+s)}, v{b+3}, v{b+4}, v{b+5}")
        for s in range(2):
            b=D+8*s
            a(f"v_max3_f32 v{t(i,s)}, v{t(i,s)}, v{b+6}, v{b+7}")
        for s in range(2): a(f"v_max_f32 v{t(i,s)}, v{t(i,s)}, v{t(i,2+s)}")
    def xhalf(op,post):
        a("s_nop 1")
        for i in range(n): a(f"v_permlane32_swap_b32 v{t(i,0)}, v{t(i,1)}")
        a("s_nop 1")
        for i in range(n): a(f"{op} v{t(i,0)}, v{t(i,0)}, v{t(i,1)}")
        for i in range(n): a(post(t(i,0)))
        a("s_nop 0")
        for i in range(n): a(f"v_mov_b32 v{t(i,2)}, v{t(i,0)}")
        a("s_nop 1")
        for i in range(n): a(f"v_permlane32_swap_b32 v{t(i,0)}, v{t(i,2)}")
        a("s_nop 1")
    xhalf("v_max_f32",lambda r:f"v_mul_f32 v{r}, 0xbfb8aa3b, v{r}")
    for i,D in enumerate(Ds):
        for p in range(8):
            m=t(i,2*(p>>2))
            a(f"v_pk_fma_f32 {R(D+2*p,2)}, {R(D+2*p,2)}, s[{sl2e}:{sl2e+1}], {R(m,2)} op_sel_hi:[1,1,0]")
        for r in range(16): a(f"v_exp_f32 v{D+r}, v{D+r}")
    for i,D in enumerate(Ds):
        for s in range(2):
            b=D+8*s; u=t(i,2*s)
            a(f"v_pk_add_f32 {R(u,2)}, {R(b,2)}, {R(b+2,2)}")
        for q in (4,6):
            for s in range(2):
                b=D+8*s; u=t(i,2*s)
                a(f"v_pk_add_f32 {R(u,2)}, {R(u,2)}, {R(b+q,2)}")
        a(f"v_add_f32 v{t(i,0)}, v{t(i,0)}, v{t(i,1)}\nv_add_f32 v{t(i,1)}, v{t(i,2)}, v{t(i,3)}")
    xhalf("v_add_f32",lambda r:f"v_rcp_f32 v{r}, v{r}")
    for i,D in enumerate(Ds):
        for p in range(8):
            m=t(i,2*(p>>2))
            a(f"v_pk_mul_f32 {R(D+2*p,2)}, {R(D+2*p,2)}, {R(m,2)} op_sel_hi:[1,0]")
def kd(name,vg,sg=100):
    return f""".p2align 6
.amdhsa_kernel {name}
  .amdhsa_next_free_vgpr {vg}
  .amdhsa_next_free_sgpr {sg}
  .amdhsa_accum_offset {(vg+3)//4*4}
  .amdhsa_group_segment_fixed_size 0
  .amdhsa_kernarg_size 96
  .amdhsa_user_sgpr_count 2
  .amdhsa_user_sgpr_kernarg_segment_ptr 1
  .amdhsa_system_sgpr_workgroup_id_x 1
.end_amdhsa_kernel
"""
def head(name): return f".globl {name}\n.p2align 8\n.type {name},@function\n{name}:\n"

import os
PROF=int(os.environ.get('PROF','0'))
def ts(a,i,m=1):
    if PROF==m or (PROF and i==0): a(f"s_memrealtime s[{80+2*i}:{81+2*i}]"+("\ns_waitcnt lgkmcnt(0)" if m>1 else ""))
def tsend(a,k,i):
    if not PROF: return
    a(f"s_waitcnt vmcnt(0)\ns_memrealtime s[{80+2*i}:{81+2*i}]\ns_waitcnt lgkmcnt(0)\ns_lshl_b32 s96, s2, 3\ns_add_u32 s96, s96, s67\ns_lshl_b32 s96, s96, 5\ns_add_u32 s96, s96, {0xF00000+k*0x10000}\nv_mov_b32 v1, 0")
    if PROF==2: a("s_getreg_b32 s82, hwreg(HW_REG_HW_ID)")
    for j in range(8): a(f"v_mov_b32 v{4+j}, s{80+2*j}")
    if os.environ.get('DBG'):
        for j in range(8): a(f"v_subrev_u32 v{4+j}, s80, v{4+j}")
        a("s_xor_b32 s96, s2, 8\ns_or_b32 s96, s96, s67\ns_lshl_b32 s96, s96, 8\nv_lshl_add_u32 v1, v0, 8, s96\nbuffer_store_dwordx4 v[4:7], v1, s[76:79], 0 offen offset:32\nbuffer_store_dwordx4 v[8:11], v1, s[76:79], 0 offen offset:48")
        return
    a("buffer_store_dwordx4 v[4:7], v1, s[56:59], s96 offen\nbuffer_store_dwordx4 v[8:11], v1, s[56:59], s96 offen offset:16")

WS_FA=0x700000; WS_FB=0x708000; WS_F1=0x710000; LA=int(os.environ.get('LA','4')); ROT=int(os.environ.get('ROT','7'))
XCH=135168; QL=151552; FLDS=163840
```

```python
from common import *
import k1
KB=0; VB=65536; VS=1040; RB=VB+64*VS
LDS=FLDS
PRIO=int(os.environ.get('PRIO','1'))
def gen():
    a=Asm()
    S=[16,32]; O=48; Q=80; KF=84; V0=88; V1=92; IDX=15
    QB=96; WP=100; KP=104; PQ=136; T=152; KVF=156
    WA=192; OB=128; OA=192; PL=64
    def spin(lbl,load,chk,sl=1):
        a(f"{lbl}:\n{chk}\ns_cbranch_vccz {lbl}_OK\ns_sleep {sl}\n{load}\ns_add_u32 s97, s97, 1\ns_waitcnt vmcnt(0)\ns_cmp_lt_u32 s97, 0x40000\ns_cbranch_scc1 {lbl}\n{lbl}_OK:")
    def tail():
        ld=f"buffer_load_dword v{PL}, v2, s[56:59], s34 offen sc1"
        a(f"""v_lshlrev_b32 v2, 2, v0
        s_and_b32 s34, s2, 63
        s_lshl_b32 s34, s34, 10
        s_add_u32 s34, s34, {WS_F1}
        v_mul_u32_u24 v5, {VS}, v0
        v_add_u32 v5, {VB+1024}, v5""")
        for r in range(4): a(f"v_mov_b32 v{16+r}, 0x3f803f80")
        a(f"""ds_write_b128 v5, v[16:19]
        s_lshl_b32 s22, s74, 1
        s_and_b32 s24, s75, 1
        s_add_u32 s22, s22, s24
        s_lshl_b32 s22, s22, 2
        s_lshr_b32 s24, s75, 1
        s_add_u32 s22, s22, s24
        s_lshl_b32 s22, s22, 13
        s_lshl_b32 s24, s21, 11
        s_add_u32 s22, s22, s24
        s_mul_i32 s26, s21, {4*VS}
        v_mov_b32 v{PL}, 0
        v_mov_b32 v3, {FLDS-4}
        s_cmp_lg_u32 s21, 0
        s_cbranch_scc1 SP_L""")
        ldr=lambda r:ld.replace(f"v{PL},",f"v{PL+r},")
        for r in range(3): a(ldr(r)+"\ns_sleep 2")
        a("SP_A:")
        for r in range(4): a(ldr((r+3)%4)+f"\ns_waitcnt vmcnt(3)\nv_cmp_ne_u32 vcc, s99, v{PL+r}\ns_cbranch_vccz SP_A_OK")
        a("s_add_u32 s97, s97, 1\ns_cmp_lt_u32 s97, 0x40000\ns_cbranch_scc1 SP_A\nSP_A_OK:")
        a(f"ds_write_b32 v3, v3\ns_branch SP_L_OK")
        spin("SP_L",f"ds_read_b32 v{PL}, v3\ns_waitcnt lgkmcnt(0)",f"v_cmp_eq_u32 vcc, 0, v{PL}")
        for i in range(2): a(f"s_add_u32 m0, s24, {QL+i*1024}\ns_add_u32 s27, s22, {i*1024}\nbuffer_load_dwordx4 v13, s[56:59], s27 offen sc1 lds")
        for c in range(1):
            for i in range(4):
                a(f"s_add_u32 m0, s36, {KB+c*16384+i*1024}\ns_add_u32 s27, s36, {WS_K+c*16384+i*1024}\nbuffer_load_dwordx4 v13, s[56:59], s27 offen sc1 lds")
                a(f"s_add_u32 m0, s26, {VB+(c*16+i)*VS}\ns_add_u32 s27, s36, {WS_V+c*16384+i*1024}\nbuffer_load_dwordx4 v13, s[56:59], s27 offen sc1 lds")
    k1.gen(a,tail)
    a("K2_START:"); ts(a,3)
    a(f"""s_load_dwordx2 s[4:5], s[0:1], 32
    s_load_dwordx4 s[8:11], s[0:1], 64
    s_mov_b32 s21, s67
    s_lshl_b32 s22, s74, 1
    s_and_b32 s24, s75, 1
    s_add_u32 s22, s22, s24
    s_lshl_b32 s22, s22, 2
    s_lshr_b32 s24, s75, 1
    s_add_u32 s22, s22, s24
    s_lshl_b32 s22, s22, 3
    s_add_u32 s22, s22, s21
    s_lshl_b32 s22, s22, 10
    s_lshl_b32 s24, s75, 3
    s_add_u32 s24, s24, s21
    s_lshl_b32 s24, s24, 5
    s_add_u32 s24, s24, s74
    s_lshl_b32 s24, s24, 10
    v_and_b32 v2, 15, v0
    v_lshrrev_b32 v3, 5, v0
    v_lshl_add_u32 v4, v3, 6, v2
    v_lshlrev_b32 v14, 1, v4
    v_lshlrev_b32 v12, 3, v0
    v_bfe_u32 v6, v0, 4, 1
    v_cmp_eq_u32 s[70:71], 1, v6
    v_lshl_add_u32 v7, v3, 4, v2
    v_lshlrev_b32 v7, 4, v7
    v_add_u32 v8, 512, v7
    v_mov_b32 v9, 1024
    v_cndmask_b32 v10, v7, v9, s[70:71]
    v_cndmask_b32 v11, v8, v9, s[70:71]
    v_add_u32 v10, {VB}, v10
    v_add_u32 v11, {VB}, v11
    v_mul_u32_u24 v9, 0x8000, v6
    v_lshl_or_b32 v9, v9, 16, v9
    v_mov_b32 v{IDX}, 0xdddddddd
    s_mov_b32 s72, {LOG2E}
    s_mov_b32 s73, {LOG2E}
    s_lshl_b32 s27, s21, 10
    s_add_u32 s27, s27, {QL}
    v_add_u32 v2, s27, v13
    v_mov_b32 v1, {FLDS-8}
    ds_read_b32 v1, v1
    s_and_b32 s28, s2, 63
    s_lshl_b32 s28, s28, 10
    s_add_u32 s28, s28, {WS_F1}""")
    for r in range(16): a(f"v_mov_b32 v{O+r}, 0")
    a("s_waitcnt vmcnt(0) lgkmcnt(0)\ns_barrier"); ts(a,4); ts(a,1,3)
    a('v_readfirstlane_b32 s99, v1')
    srd(a,40,4,0x80000); srd(a,44,8,0x80000); srd(a,48,10,0x400000)
    rk=lambda t:f"ds_read_b128 {R(KF,4)}, v13 offset:{KB+t*1024}"
    rv=lambda t,g:f"ds_read_b128 {R(V1 if g else V0,4)}, v{10+g} offset:{t*VS}"
    sm=lambda v,p:f"v_smfmac_f32_32x32x32_bf16 {R(O,16)}, {R(v,4)}, {R(p,8)}, v{IDX}"
    a(f"ds_read_b128 {R(Q,4)}, v2"); a(rk(0)); a("s_waitcnt lgkmcnt(0)"); a(mfma(S[0],KF,Q,'0')); a(rk(1)); a(rv(0,0)); a("s_nop 7\ns_nop 1")
    ldB=f"buffer_load_dwordx4 {R(PL,4)}, v13, s[56:59], s28 offen sc1"
    SCH={}
    def sched(L,i0,per,step=1):
        for k,x in enumerate(L): SCH.setdefault(i0+(k//per)*step,[]).append(x)
    a(f"s_lshl_b32 s60, s21, 11\ns_mul_i32 s61, s21, {2*VS}")
    L=[]
    for c in range(1,4):
        for i in range(2):
            L.append(f"s_add_u32 m0, s60, {KB+c*16384+i*1024}\ns_add_u32 s27, s60, {WS_K+c*16384+i*1024}\nbuffer_load_dwordx4 v13, s[56:59], s27 offen sc1 lds")
            L.append(f"s_add_u32 m0, s61, {VB+(c*16+i)*VS}\ns_add_u32 s27, s60, {WS_V+c*16384+i*1024}\nbuffer_load_dwordx4 v13, s[56:59], s27 offen sc1 lds")
    sched(L,0,2)
    def bloads():
        a("s_waitcnt vmcnt(0)"); spin("SP_B",ldB,"\n".join(f"v_xor_b32 v{PL+r}, s99, v{PL+r}" for r in range(4))+f"\nv_or3_b32 v{PL}, v{PL}, v{PL+1}, v{PL+2}\nv_or_b32 v{PL}, v{PL}, v{PL+3}\nv_cmp_ne_u32 vcc, 0, v{PL}")
        a(f"s_add_u32 s27, s24, {WS_QB}\nbuffer_load_dwordx4 {R(QB,4)}, v13, s[56:59], s27 offen sc1\ns_lshl_b32 s62, s74, 9")
        b=Asm(); load_wphi(b,PQ,14,52,'s62'); sched(b.l,19,2)
        a(f"s_lshl_b32 s27, s74, 16\ns_lshl_b32 s28, s21, 9\ns_add_u32 s27, s27, s28\ns_add_u32 s27, s27, {WS_KVP}")
        sched([f"buffer_load_dwordx2 {R(KP+2*p,2)}, v12, s[56:59], s27 offen sc1\ns_add_u32 s27, s27, 4096" for p in range(16)],11,2)
    def bside1():
        a("s_waitcnt vmcnt(0)"); pack_wphi(a,WP,PQ,4,9)
        a("s_nop 1"); a(mfma(PQ,WP,QB,'0'))
        st=16
        while st>=2:
            for p in range(0,st,2): a(f"v_pk_add_f32 {R(KP+p,2)}, {R(KP+p,2)}, {R(KP+st+p,2)}")
            st//=2
        a(f"""v_cvt_pk_bf16_f32 v{KP}, v{KP}, v{KP+1}
        s_lshl_b32 s27, s21, 2
        s_and_b32 s28, s27, 12
        s_lshr_b32 s27, s21, 2
        s_lshl_b32 s27, s27, 10
        s_add_u32 s27, s27, s28
        s_add_u32 s27, s27, {RB}
        v_add_u32 v2, s27, v13
        ds_write_b32 v2, v{KP}""")
        softmax_multi(a,[PQ],T,72); cvt(a,PQ,PQ,8)
        a("s_waitcnt lgkmcnt(0)")
    def bside2():
        a(f"v_add_u32 v2, {RB}, v13\nds_read_b128 {R(KVF,4)}, v2\nds_read_b128 {R(KVF+4,4)}, v2 offset:1024\ns_waitcnt lgkmcnt(0)")
        a(mfma(KP,KVF,PQ,'0')); a(mfma(KP,KVF+4,PQ+4,KP))
    def bside3():
        a(f"v_add_f32 v{KP+8}, 0x358637bd, v{KP+8}\nv_rcp_f32 v{KP+8}, v{KP+8}\ns_add_u32 s27, s24, {WS_O+0x200000}")
        for p in range(4): a(f"v_pk_mul_f32 {R(KP+2*p,2)}, {R(KP+2*p,2)}, {R(KP+8,2)} op_sel_hi:[1,0]")
        cvt(a,KP,KP,4)
        a(f"buffer_store_dwordx4 {R(KP,4)}, v13, s[56:59], s27 offen sc1")
    def flag(l,hi,sh,lo,base,n):
        a(f"""s_cmp_lg_u32 s21, 4
        s_cbranch_scc1 {l}
        s_lshl_b32 s68, s{hi}, {sh+7}
        s_lshl_b32 s69, s{lo}, 2
        s_add_u32 s68, s68, s69
        s_add_u32 s68, s68, {base}
        v_lshrrev_b32 v3, {sh}, v0
        v_lshlrev_b32 v3, 24, v3
        v_lshl_add_u32 v3, v0, 7, v3
        v_mov_b32 v2, s99
        buffer_store_dword v2, v3, s[56:59], s68 offen sc1
        {l}:""")
    def woloads():
        a(f"""v_lshrrev_b32 v2, 3, v0
        v_and_b32 v3, 7, v0
        v_lshlrev_b32 v4, 2, v6
        v_xor_b32 v3, v3, v4
        v_lshlrev_b32 v3, 4, v3
        v_lshl_add_u32 v4, v2, 10, v3
        s_lshl_b32 s64, s21, 16
        s_lshl_b32 s28, s75, 7
        s_add_u32 s64, s64, s28
        s_lshr_b32 s30, s21, 2
        s_lshl_b32 s31, s30, 16
        s_and_b32 s25, s21, 3
        s_lshl_b32 s25, s25, 13
        s_add_u32 s25, s25, s31
        s_lshl_b32 s26, s30, 9
        s_add_u32 s26, s26, 32768""")
        sched([f"s_add_u32 s65, s64, {i*8192}\nbuffer_load_dwordx4 {R(WA+4*i,4)}, v4, s[40:43], s65 offen" for i in range(8)],11,1)
        sched([f"s_add_u32 m0, s25, {i*1024}\ns_add_u32 s65, s64, {i*8192}\nbuffer_load_dwordx4 v4, s[44:47], s65 offen lds" for i in range(8)],36,1)
    def pol():
        a(f"""s_lshl_b32 s28, s74, 3
        s_add_u32 s28, s28, s75
        s_lshl_b32 s28, s28, 7
        s_add_u32 s28, s28, {WS_FB}
        v_and_b32 v1, 31, v0
        v_lshlrev_b32 v1, 2, v1
        s_lshl_b32 s29, s74, 1
        s_and_b32 s32, s21, 1
        s_add_u32 s33, s29, s32
        s_lshl_b32 s29, s33, 1
        s_add_u32 s29, s29, s30
        s_lshl_b32 s29, s29, 14
        s_add_u32 s29, s29, {WS_O}""")
    ldF=f"buffer_load_dword v{PL}, v1, s[56:59], s28 offen sc1"
    chkF=f"v_cmp_ne_u32 vcc, s99, v{PL}"
    def oloads(d,off,a=a):
        for k in range(16):
            a((f"s_add_u32 s27, s29, {off+k*1024}\n" if k%4==0 else "")+f"buffer_load_dwordx4 {R(d+4*k,4)}, v13, s[56:59], s27 offen offset:{(k%4)*1024} sc1")
    for i in range(64):
        s=S[i&1]; n=S[1-(i&1)]
        if PROF==4 and i in (16,26): a(f"s_memtime s[{82+(i==26)*2}:{83+(i==26)*2}]\ns_memrealtime s[{86+(i==26)*2}:{87+(i==26)*2}]\ns_waitcnt lgkmcnt(0)")
        if PROF==4 and i==27: a("s_sub_u32 s82, s84, s82\ns_add_u32 s82, s82, s80\ns_sub_u32 s84, s88, s86\ns_add_u32 s84, s84, s80")
        for lo,hi in ((0,14),(14,30),(30,36),(36,64)):
            for q in range(4):
                if PRIO and i==lo+(hi-lo)*q//4: a(f"s_setprio {3-q}")
        if i==6: a(ldB)
        if i==10: ts(a,2,3); bloads(); woloads()
        if i==14: a("s_barrier")
        if i==28: ts(a,3,3); bside1()
        if i==30: a("s_barrier"); bside2()
        if i==32: bside3(); ts(a,4,3)
        if i==36: a("s_waitcnt vmcnt(0)\ns_barrier"); flag("FL_B",75,5,74,WS_FB,32); pol(); ts(a,5,3)
        if i==44: a(ldF)
        if i==49:
            a("s_waitcnt vmcnt(0)"); spin("SP_F",ldF,chkF); ts(a,6,3)
            L=[]; oloads(OB,0x200000,L.append); sched(L[:8],49,2); sched(L[8:],53,1)
        X=SCH.get(i,[])
        E=lambda x,y:[a(f"v_exp_f32 v{s+r}, v{s+r}") for r in range(x,y)]
        E(0,2)
        if i>0: a(f"s_waitcnt lgkmcnt({2 if i<63 else 1})"); a(sm(V1,n+8))
        a(rv(i,1))
        if X: a(X.pop(0))
        E(2,5)
        if i<63:
            a("s_waitcnt lgkmcnt(2)"); a(mfma(n,KF,Q,'0'))
            if i<62: a(rk(i+2))
        if X: a(X.pop(0))
        E(5,10)
        a(f"s_waitcnt lgkmcnt({2 if i<62 else 1})"); a(sm(V0,s))
        if i<63: a(rv(i+1,0))
        if X: a(X.pop(0))
        assert not X
        E(10,16)
    a("s_waitcnt lgkmcnt(0)\ns_nop 0"); a(sm(V1,S[1]+8)); ts(a,5)
    a(f"""v_lshrrev_b32 v3, 5, v0
    v_bfe_u32 v4, v0, 2, 2
    v_lshl_add_u32 v5, v3, 2, v4
    v_bfe_u32 v7, v0, 1, 1
    v_lshl_add_u32 v7, v6, 1, v7
    s_bfe_u32 s34, s21, 0x10001
    v_bfe_u32 v8, v0, 3, 1
    v_xor_b32 v8, s34, v8
    v_lshl_add_u32 v7, v8, 2, v7
    v_lshlrev_b32 v7, 4, v7
    v_and_b32 v8, 1, v0
    v_lshl_add_u32 v7, v8, 3, v7
    v_lshl_add_u32 v7, v5, 7, v7
    v_mov_b32 v2, 0x1f800000
    v_mov_b32 v4, 0x5f800000
    v_cmp_nge_f32 vcc, v{O+8}, v2
    v_cmp_nle_f32 s[36:37], v{O+8}, v4
    s_or_b64 vcc, vcc, s[36:37]
    s_cbranch_vccnz K2_MAX
    K2_FIN:
    v_rcp_f32 v{O+8}, v{O+8}
    s_add_u32 s27, s22, {WS_O}""")
    for p in range(4): a(f"v_pk_mul_f32 {R(O+2*p,2)}, {R(O+2*p,2)}, {R(O+8,2)} op_sel_hi:[1,0]")
    cvt(a,O,O,4)
    a(f"""buffer_store_dwordx4 {R(O,4)}, v13, s[56:59], s27 offen sc1
    v_add_u32 v24, s31, v7
    v_add_u32 v25, s26, v24
    s_add_u32 s25, s25, s26
    v_add_u32 v26, s25, v13
    s_lshl_b32 s35, s21, 11
    s_add_u32 s35, s35, {XCH}
    v_add_u32 v27, s35, v13
    s_xor_b32 s35, s21, 4
    s_lshl_b32 s35, s35, 11
    s_add_u32 s35, s35, {XCH}
    v_add_u32 v28, s35, v13
    v_and_b32 v2, 31, v0
    v_lshlrev_b32 v2, 11, v2
    v_lshl_add_u32 v14, v3, 4, v2
    s_lshl_b32 s63, s33, 16
    s_lshl_b32 s35, s75, 7
    s_add_u32 s63, s63, s35
    s_lshl_b32 s35, s34, 6
    s_add_u32 s63, s63, s35
    s_lshl_b32 s35, s30, 5
    s_add_u32 s63, s63, s35
    s_sub_u32 s28, s28, {WS_FB-WS_FA}
    v_and_b32 v1, 28, v1
    s_cmp_lg_u32 s30, 0
    s_cselect_b64 s[38:39], -1, 0""")
    ACC=32; WF=64+4
    def proj(vb,of,wait,mid=''):
        rd=lambda k:[a(f"ds_read_b64_tr_b16 {R(WF+4*(k%3)+2*t,2)}, v{vb} offset:{(16*k+8*t)*128}") for t in range(2)]
        rd(0); rd(1)
        for k in range(16):
            if k<14: rd(k+2)
            if k==6: a(mid)
            a(f"s_waitcnt lgkmcnt({min(4,2*(15-k))})"+(f" vmcnt({15-k})" if wait else ""))
            a(mfma(ACC,WF+4*(k%3),of+4*k,'0' if k==0 else ACC))
    def xsend():
        for r in range(8): a(f"v_cndmask_b32 v{16+r}, v{ACC+r}, v{ACC+8+r}, s[38:39]\nv_cndmask_b32 v{ACC+r}, v{ACC+8+r}, v{ACC+r}, s[38:39]")
        a(f"ds_write_b128 v27, {R(ACC,4)}\nds_write_b128 v27, {R(ACC+4,4)} offset:1024")
    def xrecv(d):
        a(f"s_waitcnt lgkmcnt(0)\ns_barrier\nds_read_b128 {R(ACC,4)}, v28\nds_read_b128 {R(ACC+4,4)}, v28 offset:1024\ns_waitcnt lgkmcnt(0)")
        for p in range(4): a(f"v_pk_add_f32 {R(16+2*p,2)}, {R(16+2*p,2)}, {R(ACC+2*p,2)}")
        cvt(a,d,16,4); a(f"s_nop 1\nv_permlane32_swap_b32 v{d}, v{d+2}\nv_permlane32_swap_b32 v{d+1}, v{d+3}")
    a("s_waitcnt vmcnt(0)\ns_barrier"); flag("FL_A",74,3,75,WS_FA,8); ts(a,6)
    for i in range(8): a(f"ds_write_b128 v26, {R(WA+4*i,4)} offset:{i*1024}")
    proj(24,OB,False,ldF)
    a("s_waitcnt vmcnt(0)"); spin("SP_G",ldF,chkF); oloads(OA,0)
    xsend(); xrecv(60)
    proj(25,OA,True)
    a("buffer_store_dwordx4 v[60:63], v14, s[48:51], s63 offen offset:1024\ns_barrier\ns_nop 7\ns_nop 1"); xsend(); xrecv(16)
    a("buffer_store_dwordx4 v[16:19], v14, s[48:51], s63 offen")
    tsend(a,0,7)
    a("K_END:\ns_endpgm")
    C=16; SS=32
    a(f"""K2_MAX:
    s_mov_b32 s27, {WS_K}
    v_mov_b32 v4, 0xff800000
    K2_MAXL:
    buffer_load_dwordx4 {R(KF,4)}, v13, s[56:59], s27 offen sc1
    s_waitcnt vmcnt(0)""")
    a(mfma(SS,KF,Q,'0')); a("s_nop 7\ns_nop 4")
    for r in range(8): a(f"v_max3_f32 v4, v4, v{SS+2*r}, v{SS+2*r+1}")
    a(f"""s_add_u32 s27, s27, 1024
    s_cmp_lt_u32 s27, {WS_K+65536}
    s_cbranch_scc1 K2_MAXL
    v_mov_b32 v2, v4
    s_nop 1
    v_permlane32_swap_b32 v2, v4
    s_nop 1
    v_max_f32 v4, v2, v4
    v_subrev_u32 v2, {VB}, v10
    v_mov_b32 v8, 0x3f803f80
    s_mov_b32 s27, {WS_K}""")
    for r in range(16): a(f"v_sub_f32 v{C+r}, 0, v4\nv_mov_b32 v{O+r}, 0")
    a(f"""K2_SUML:
    s_add_u32 s35, s27, {WS_V-WS_K}
    buffer_load_dwordx4 {R(KF,4)}, v13, s[56:59], s27 offen sc1
    buffer_load_dwordx4 {R(V0,4)}, v2, s[56:59], s35 offen sc1
    buffer_load_dwordx4 {R(V1,4)}, v2, s[56:59], s35 offen offset:512 sc1
    s_waitcnt vmcnt(0)""")
    a(mfma(SS,KF,Q,C))
    for r in range(8): a(f"v_cndmask_b32 v{V0+r}, v{V0+r}, v8, s[70:71]")
    a("s_nop 4")
    for r in range(16): a(f"v_exp_f32 v{SS+r}, v{SS+r}")
    a("s_nop 1"); a(sm(V0,SS)); a(sm(V1,SS+8))
    a(f"s_add_u32 s27, s27, 1024\ns_cmp_lt_u32 s27, {WS_K+65536}\ns_nop 7\ns_nop 4\ns_cbranch_scc1 K2_SUML\ns_branch K2_FIN")
    return a.text()
```

```python
from common import *
XB,WB,EB=0,65536,131072
LDS=131072+16384
def gen(a,loader_tail):
    a("""s_cmp_ge_u32 s2, 256
    s_cbranch_scc1 K_END
    s_load_dwordx8 s[4:11], s[0:1], 0
    s_load_dwordx4 s[12:15], s[0:1], 40
    s_load_dwordx2 s[16:17], s[0:1], 56
    s_load_dwordx4 s[76:79], s[0:1], 80
    v_lshrrev_b32 v1, 6, v0
    v_and_b32 v0, 63, v0
    s_and_b32 s20, s2, 7
    v_readfirstlane_b32 s67, v1
    s_and_b32 s21, s67, 3
    s_mov_b32 s97, 0
    s_lshr_b32 s22, s2, 3
    s_lshr_b32 s23, s20, 1
    s_and_b32 s24, s20, 1
    s_lshl_b32 s24, s24, 3
    s_lshr_b32 s25, s22, 2
    s_add_u32 s24, s24, s25
    s_and_b32 s25, s22, 3
    s_lshr_b32 s26, s21, 1
    s_and_b32 s27, s21, 1""")
    ts(a,0)
    a("""s_movk_i32 s28, 3072
    s_cmp_eq_u32 s23, 0
    s_cselect_b32 s28, 1024, s28
    s_lshl_b32 s29, s25, 8
    s_sub_u32 s32, s23, 2
    s_lshl_b32 s32, s32, 2
    s_add_u32 s32, s32, s25
    s_lshl_b32 s33, s32, 7
    s_add_u32 s33, s33, 1024
    s_cmp_ge_u32 s23, 2
    s_cselect_b32 s29, s33, s29
    s_cselect_b32 s30, 1024, 64
    s_cselect_b32 s31, 64, 128
    v_lshrrev_b32 v2, 4, v0
    v_and_b32 v3, 15, v0
    v_lshlrev_b32 v4, 2, v2
    v_xor_b32 v3, v3, v4
    v_and_b32 v4, 3, v3
    v_lshlrev_b32 v4, 4, v4
    v_bfe_u32 v5, v3, 2, 1
    v_mul_lo_u32 v5, v5, s30
    v_lshrrev_b32 v6, 3, v3
    v_mul_lo_u32 v6, v6, s31
    v_add3_u32 v4, v4, v5, v6
    s_lshl_b32 s34, s21, 4
    v_add_u32 v5, s34, v2
    v_mul_lo_u32 v5, v5, s28
    v_add3_u32 v10, v4, v5, s29
    v_lshrrev_b32 v3, 3, v0
    s_lshl_b32 s34, s21, 5
    s_lshl_b32 s35, s24, 7
    s_add_u32 s34, s34, s35
    v_add_u32 v3, s34, v3
    v_lshlrev_b32 v3, 10, v3
    v_and_b32 v4, 7, v0
    v_xor_b32 v4, v4, v2
    v_lshl_add_u32 v11, v4, 4, v3
    v_xor_b32 v12, 64, v11
    v_lshlrev_b32 v13, 4, v0
    s_waitcnt lgkmcnt(0)
    s_cmp_eq_u32 s23, 0
    s_cselect_b32 s40, s4, s12
    s_cselect_b32 s41, s5, s13
    s_mov_b32 s42, 0x200000
    s_mov_b32 s43, 0x00020000
    s_cselect_b32 s44, s6, s14
    s_cselect_b32 s45, s7, s15
    s_lshl_b32 s46, s28, 9
    s_mov_b32 s47, 0x00020000
    s_cmp_lt_u32 s21, 2
    s_cselect_b32 s48, s8, s10
    s_cselect_b32 s49, s9, s11
    s_mov_b32 s50, 16384
    s_mov_b32 s51, 0x00020000""")
    srd(a,52,16,16384); srd(a,56,78,WS_SIZE)
    a("s_mov_b32 s78, 256\ns_mov_b32 s79, 0x00020000")
    a(f"""s_and_b32 s74, s2, 7
    s_lshl_b32 s74, s74, 2
    s_bfe_u32 s75, s2, 0x20003
    s_add_u32 s74, s74, s75
    s_lshr_b32 s75, s2, 5
    s_and_b32 s3, s75, {ROT}
    s_cmp_ge_u32 s67, 4
    s_cbranch_scc1 K1_LD""")
    a("""s_lshl_b32 s36, s21, 12
    s_mov_b32 s37, 0
    s_lshl_b32 s38, s28, 2
    s_lshl_b32 s39, s28, 6
    s_lshl_b32 s60, s21, 10
    s_lshl_b32 s61, s27, 10""")
    def dma(c,extra):
        L=[]; sl=c%4
        for i in range(4):
            L.append((f"s_add_u32 s98, s3, {c}\ns_and_b32 s98, s98, 7\n" if i==0 else "")+f"s_add_u32 m0, s36, {WB+sl*16384+i*1024}\n"+("s_mul_i32 s37, s98, s39" if i==0 else "s_add_u32 s37, s37, s38")+"\nbuffer_load_dwordx4 v10, s[44:47], s37 offen lds")
        if extra: L.append(f"s_add_u32 m0, s60, {EB+sl*4096}\ns_lshl_b32 s62, s98, 11\ns_add_u32 s62, s62, s61\nbuffer_load_dwordx4 v13, s[48:51], s62 offen lds")
        return L
    def addrs():
        a("""v_and_b32 v2, 31, v0
        v_lshrrev_b32 v3, 5, v0
        v_bfe_u32 v4, v0, 1, 3
        v_xor_b32 v4, v4, v3
        v_lshlrev_b32 v4, 4, v4
        v_lshl_add_u32 v4, v2, 7, v4
        s_lshl_b32 s34, s26, 13
        s_and_b32 s35, s25, 1
        s_lshl_b32 s35, s35, 12
        s_add_u32 s34, s34, s35
        v_add_u32 v16, s34, v4""")
        for ks in range(1,4): a(f"v_xor_b32 v{16+ks}, {ks*32}, v16")
        for ks in range(4): a(f"v_xor_b32 v{20+ks}, 4096, v{16+ks}")
        a(f"""v_bfe_u32 v4, v0, 2, 2
        v_lshl_add_u32 v5, v3, 3, v4
        v_bfe_u32 v6, v0, 4, 1
        v_bfe_u32 v7, v0, 1, 1
        v_lshl_add_u32 v6, v6, 1, v7
        s_lshl_b32 s34, s27, 3
        v_add_u32 v6, s34, v6
        v_lshlrev_b32 v7, 2, v4
        v_xor_b32 v6, v6, v7
        v_lshlrev_b32 v6, 4, v6
        v_and_b32 v7, 1, v0
        v_lshl_add_u32 v6, v7, 3, v6
        v_lshl_add_u32 v6, v5, 8, v6
        v_add_u32 v24, {WB}, v6
        v_xor_b32 v25, 64, v24
        v_and_b32 v7, 3, v0
        v_lshlrev_b32 v7, 3, v7
        v_lshl_add_u32 v7, v5, 5, v7
        s_lshl_b32 s34, s27, 11
        s_add_u32 s34, s34, {EB}
        v_add_u32 v26, s34, v7""")
    ACC=64; XF=32;
    EX=128
    def reads(c,ks,extra):
        f=(144 if (ks&1) else 32); sl=c%4; L=[]
        L.append(f"ds_read_b128 {R(f,4)}, v{16+ks} offset:{sl*16384}")
        for t in range(2): L.append(f"ds_read_b64_tr_b16 {R(f+8+2*t,2)}, v24 offset:{sl*16384+(16*ks+4*t)*256}")
        for t in range(2): L.append(f"ds_read_b64_tr_b16 {R(f+12+2*t,2)}, v25 offset:{sl*16384+(16*ks+4*t)*256}")
        L.append(f"ds_read_b128 {R(f+4,4)}, v{20+ks} offset:{sl*16384}")
        if extra:
            for t in range(2): L.append(f"ds_read_b64_tr_b16 {R(f+16+2*t,2)}, v26 offset:{sl*4096+(16*ks+4*t)*32}")
        return L
    def mainloop(kind,npre):
        extra=kind!='kv'; nd=5 if extra else 4; nr=8 if extra else 6
        a(f"s_waitcnt vmcnt({3*nd})\ns_barrier"); ts(a,1)
        for x in reads(0,0,extra): a(x)
        D=[]
        for c in range(8):
            for ks in range(4):
                f=(144 if (ks&1) else 32)
                if ks<3:
                    nxt=reads(c,ks+1,extra)
                    for x in nxt: a(x)
                    a(f"s_waitcnt lgkmcnt({len(nxt)})")
                else:
                    assert not D
                    a(f"s_waitcnt vmcnt({max(min(c+3,7)-c-1,0)*nd}) lgkmcnt(0)\ns_barrier")
                    if c==7: ts(a,2)
                    if c<7:
                        for x in reads(c+1,0,extra): a(x)
                    D=dma(c+4,extra) if c+4<8 else []
                    if kind=='kv' and c==6: load_wphi(a,184,14,52,'s18'); load_wphi(a,192,14,52,'s19')
                first=(c==0 and ks==0)
                M=[]
                for tm in range(2):
                    for tn in range(2):
                        d=ACC+16*(2*tm+tn); x=f+4*tm; w=f+8+4*tn
                        A,B=(x,w) if (kind=='kv' and tn==1) else (w,x)
                        M.append(mfma(d,A,B,'0' if first else d))
                if extra:
                    A,B=(f+16,f) if kind=='qk' else (f,f+16)
                    M.append(mfma(EX,A,B,'0' if first else EX))
                for i,m in enumerate(M):
                    a(m)
                    if D and i<2: a(D.pop(0))
    a("s_cmp_ge_u32 s23, 2\ns_cbranch_scc1 K1_KV")
    for c in range(4):
        for x in dma(c,True): a(x)
    addrs()
    a(f"""s_lshl_b32 s34, s24, 2
    s_lshl_b32 s35, s26, 1
    s_add_u32 s34, s34, s35
    s_and_b32 s35, s25, 1
    s_add_u32 s66, s34, s35
    s_lshl_b32 s34, s66, 15
    s_lshl_b32 s35, s25, 13
    s_add_u32 s34, s34, s35
    s_lshl_b32 s35, s27, 12
    s_add_u32 s34, s34, s35
    s_lshl_b32 s35, s23, 21
    s_add_u32 s63, s34, s35
    s_xor_b32 s64, s63, 0x8000
    s_lshl_b32 s66, s66, 10
    s_cmp_eq_u32 s27, 0
    s_cbranch_scc0 K1_QV""")
    def qstore():
        a("s_nop 7\ns_nop 3")
        for tm in range(2):
            for tn in range(2):
                d=ACC+16*(2*tm+tn); cvt(a,d,d,8)
                for s in range(2): a(f"buffer_store_dwordx4 {R(d+4*s,4)}, v13, s[56:59], s{63+tm} offen offset:{(2*tn+s)*1024} sc1")
        a("s_lshl_b32 s34, s23, 2\ns_add_u32 s34, s34, s25\ns_cmp_lt_u32 s34, 2\ns_cbranch_scc0 K1_SIG")
    mainloop('qk',3); qstore()
    for r in range(8): a(f"v_mul_f32 v{EX+r}, 0x3eb8aa3b, v{EX+r}")
    cvt(a,EX,EX,4)
    a(f"""v_and_b32 v2, 0x33, v0
    v_bfe_u32 v3, v0, 2, 1
    v_bfe_u32 v4, v0, 3, 1
    v_lshl_or_b32 v2, v3, 3, v2
    v_lshl_or_b32 v2, v4, 2, v2
    v_lshlrev_b32 v2, 4, v2
    s_add_u32 s66, s66, {WS_K}
    buffer_store_dwordx4 {R(EX,4)}, v2, s[56:59], s66 offen sc1
    s_branch K1_SIG
    K1_QV:""")
    mainloop('qv',3); qstore()
    cvt(a,EX,EX,8)
    a(f"""v_bfe_u32 v3, v0, 4, 1
    v_cmp_eq_u32 vcc, 1, v3
    v_and_b32 v2, 15, v0
    v_lshrrev_b32 v4, 5, v0
    v_lshl_add_u32 v2, v4, 4, v2
    v_lshl_add_u32 v2, v3, 5, v2
    v_lshlrev_b32 v2, 4, v2""")
    for r in range(4): a(f"v_cndmask_b32 v{EX+r}, v{EX+r}, v{EX+4+r}, vcc")
    a(f"""s_add_u32 s66, s66, {WS_V}
    buffer_store_dwordx4 {R(EX,4)}, v2, s[56:59], s66 offen sc1
    s_branch K1_SIG
    K1_KV:""")
    WP=168; ID=176
    a("""v_and_b32 v2, 15, v0
    v_lshrrev_b32 v3, 5, v0
    v_lshl_add_u32 v2, v3, 6, v2
    v_lshlrev_b32 v14, 1, v2
    s_lshl_b32 s34, s32, 2
    s_lshl_b32 s35, s27, 1
    s_add_u32 s65, s34, s35
    s_lshl_b32 s34, s65, 9
    s_add_u32 s35, s34, 512""")
    for c in range(4):
        for x in dma(c,False): a(x)
    a("s_mov_b32 s18, s34\ns_mov_b32 s19, s35")
    a("s_mov_b32 s25, 0")
    addrs()
    a("""v_and_b32 v2, 31, v0
    v_lshlrev_b32 v3, 2, v3
    v_sub_u32 v2, v2, v3
    v_mov_b32 v4, 0x3f80
    v_mov_b32 v5, 0x3f800000""")
    for p in range(8):
        f0=16*(p>>2)+8*((p&3)>>1)+2*(p&1)
        a(f"""v_cmp_eq_u32 vcc, {f0}, v2
        v_cmp_eq_u32 s[68:69], {f0+1}, v2
        s_nop 1
        v_cndmask_b32 v6, 0, v4, vcc
        v_cndmask_b32 v{ID+p}, v6, v5, s[68:69]""")
    a(f"""v_bfe_u32 v2, v0, 4, 1
    v_cmp_eq_u32 s[70:71], 1, v2
    v_mul_u32_u24 v15, 0x8000, v2
    v_lshl_or_b32 v15, v15, 16, v15
    s_mov_b32 s72, {LOG2E}
    s_mov_b32 s73, {LOG2E}""")
    mainloop('kv',3)
    pack_wphi(a,WP,184,8,15)
    P=[184,200,216,232]
    for tm in range(2):
        d=ACC+32*tm; cvt(a,d,d,8)
    a("s_nop 1")
    for tm in range(2):
        for s in range(2): a(mfma(P[2*tm+s],WP+4*s,ACC+32*tm+4*s,'0'))
    a("v_mov_b32 v2, 0x3f803f80")
    for tm in range(2):
        d=ACC+32*tm+16; cvt(a,d,d,8)
        for r in range(8):
            a(f"v_cndmask_b32 v{d+8+r}, v2, v{d+r}, s[70:71]\nv_cndmask_b32 v{d+r}, v{d+r}, v2, s[70:71]")
    softmax_multi(a,P,32,72)
    TT=[32,48,144,ACC]
    for i in range(4):
        cvt(a,P[i],P[i],8); a("s_nop 1")
        a(mfma(TT[i],P[i],ID,'0')); a(mfma(TT[i],P[i]+4,ID+4,TT[i]))
    KV=[184,200]
    a("s_nop 5")
    for i in range(4):
        tm,s=i>>1,i&1
        if i==3: a("s_nop 1")
        cvt(a,TT[i],TT[i],8); a("s_nop 1")
        for g in range(2):
            a(mfma(KV[s],TT[i]+4*g,ACC+32*tm+16+8*s+4*g,'0' if (tm==0 and g==0) else KV[s]))
    a(f"""s_lshl_b32 s34, s21, 12
    v_add_u32 v3, s34, v13
    v_xor_b32 v4, 8192, v3
    v_add_u32 v3, {XCH}, v3
    v_add_u32 v4, {XCH}, v4
    s_add_u32 s65, s65, s26
    s_lshl_b32 s65, s65, 4
    s_add_u32 s65, s65, s24
    s_lshl_b32 s65, s65, 12
    s_add_u32 s65, s65, {WS_KVP}
    s_lshl_b32 s34, s26, 4
    v_xor_b32 v5, s34, v0
    v_lshlrev_b32 v5, 3, v5
    s_nop 4
    s_cmp_eq_u32 s26, 0
    s_cbranch_scc1 K1_X0""")
    for keep in (1,0):
        snd=KV[1-keep]; kp=KV[keep]
        for q in range(4): a(f"ds_write_b128 v3, {R(snd+4*q,4)} offset:{q*1024}")
        a("s_waitcnt lgkmcnt(0)\ns_barrier")
        for q in range(4): a(f"ds_read_b128 {R(32+4*q,4)}, v4 offset:{q*1024}")
        for q in range(4):
            a(f"s_waitcnt lgkmcnt({3-q})")
            for u in range(2):
                r=4*q+2*u
                a(f"v_pk_add_f32 {R(kp+r,2)}, {R(kp+r,2)}, {R(32+r,2)}")
                a(f"buffer_store_dwordx2 {R(kp+r,2)}, v5, s[56:59], s65 offen offset:{(r>>1)*512} sc1")
        if keep: a("s_branch K1_SIG\nK1_X0:")
    a(f"""K1_SIG:
    s_waitcnt vmcnt(0)
    s_barrier
    s_cmp_lg_u32 s67, 0
    s_cbranch_scc1 K2_START
    v_mov_b32 v3, {FLDS-8}
    ds_read_b32 v2, v3
    s_lshl_b32 s34, s20, 5
    s_add_u32 s34, s34, s22
    s_lshl_b32 s34, s34, 2
    s_add_u32 s34, s34, {WS_F1}
    v_lshlrev_b32 v3, 10, v0
    s_waitcnt lgkmcnt(0)
    buffer_store_dword v2, v3, s[56:59], s34 offen sc1
    s_branch K2_START
    K1_LD:""")
    def xl(c):
        a(f"s_add_u32 s98, s3, {c}\ns_and_b32 s98, s98, 7\ns_lshl_b32 s62, s98, 7")
        for i in range(4): a(f"buffer_load_dwordx4 {R(64+16*c+4*i,4)}, v{11+(i&1)}, s[40:43], s62 offen\ns_add_u32 s62, s62, 8192")
    a("s_memrealtime s[34:35]")
    for c in range(LA): xl(c)
    a(f"""s_lshl_b32 s36, s21, 12
    v_add_u32 v4, s36, v13
    v_mov_b32 v5, {FLDS-8}
    v_mov_b32 v7, 0
    ds_write_b32 v5, v7 offset:4
    s_waitcnt lgkmcnt(0)
    s_or_b32 s34, s34, 1
    v_mov_b32 v6, s34
    s_lshl_b32 s35, s2, 8
    v_lshl_add_u32 v3, v4, 4, s35
    buffer_store_dword v6, v3, s[76:79], 0 offen sc1""")
    for c in range(8):
        a(f"s_waitcnt vmcnt({4*(min(c+LA-1,7)-c)})")
        for i in range(4): a(f"ds_write_b128 v4, {R(64+16*c+4*i,4)} offset:{XB+(c%4)*16384+i*1024}")
        if c+LA<8: xl(c+LA)
        if c==max(7-LA,2): a("v_mov_b32 v3, s36\nbuffer_load_dword v6, v3, s[76:79], 0 offen sc1")
        a("s_waitcnt lgkmcnt(0)\ns_barrier")
    a("""s_cmp_lg_u32 s21, 0
    s_cbranch_scc1 K1_LD1
    SP_N:
    v_readfirstlane_b32 s99, v6
    s_cmp_lg_u32 s99, 0
    s_cbranch_scc1 SP_N_OK
    buffer_load_dword v6, v3, s[76:79], 0 offen sc1
    s_add_u32 s97, s97, 1
    s_waitcnt vmcnt(0)
    s_cmp_lt_u32 s97, 0x40000
    s_cbranch_scc1 SP_N
    SP_N_OK:
    ds_write_b32 v5, v6
    s_waitcnt lgkmcnt(0)
    K1_LD1:""")
    a("s_waitcnt vmcnt(0)\ns_barrier\ns_cmp_ge_u32 s23, 2\ns_cbranch_scc0 K1_LD2\ns_barrier\nK1_LD2:\ns_barrier")
    loader_tail()
```

```python
import sys,importlib
from common import *
import fused
ref=open('cdna_kernels/'+NAME+'.s.ref').read().split('\n')
hdr=[l for l in ref if l.startswith(';') and '@launch' not in l and 'Override' not in l and 'grid=ceil' not in l]
ks=[(NAME+'_kernel',fused,512,256)]
s='\n'.join(hdr)+'\n'
for n,m,b,v in ks: s+=f"; @launch {'kernel='+n+' ' if PROF else ''}grid=(256,1,1) block=({b},1,1) lds={m.LDS}\n"
s+='.amdgcn_target "amdgcn-amd-amdhsa--gfx950"\n.text\n'
for n,m,b,v in ks: s+=head(n)+m.gen()
s+='.section .rodata,"a"\n'
for n,m,b,v in ks: s+=kd(n,v)
open(sys.argv[1] if len(sys.argv)>1 else 'cdna_kernels/'+NAME+'.s','w').write(s)
```

```python
from common import *
import k1
KB=0; VB=65536; VS=1040; RB=VB+64*VS
LDS=FLDS
OST=os.environ.get('OST','')
PRIO=int(os.environ.get('PRIO','1'))
def gen():
    a=Asm()
    S=[16,32]; O=48; Q=80; KF=84; V0=88; V1=92; IDX=15
    QB=96; WP=100; KP=104; PQ=136; T=152; KVF=156
    WA=192; OB=128; OA=160; PL=64
    def spin(lbl,load,chk,sl=1):
        a(f"{lbl}:\n{chk}\ns_cbranch_vccz {lbl}_OK\ns_sleep {sl}\n{load}\ns_add_u32 s97, s97, 1\ns_waitcnt vmcnt(0)\ns_cmp_lt_u32 s97, 0x40000\ns_cbranch_scc1 {lbl}\n{lbl}_OK:")
    def tail():
        ld=f"buffer_load_dword v{PL}, v2, s[56:59], s34 offen sc1"
        a(f"""v_lshlrev_b32 v2, 2, v0
        s_and_b32 s34, s2, 63
        s_lshl_b32 s34, s34, 10
        s_add_u32 s34, s34, {WS_F1}
        v_mul_u32_u24 v5, {VS}, v0
        v_add_u32 v5, {VB+1024}, v5""")
        for r in range(4): a(f"v_mov_b32 v{16+r}, 0x3f803f80")
        a(f"""ds_write_b128 v5, v[16:19]
        s_lshl_b32 s22, s74, 1
        s_and_b32 s24, s75, 1
        s_add_u32 s22, s22, s24
        s_lshl_b32 s22, s22, 2
        s_lshr_b32 s24, s75, 1
        s_add_u32 s22, s22, s24
        s_lshl_b32 s22, s22, 13
        s_lshl_b32 s24, s21, 11
        s_add_u32 s22, s22, s24
        s_mul_i32 s26, s21, {4*VS}
        v_mov_b32 v{PL}, 0
        v_mov_b32 v3, {FLDS-4}
        s_cmp_lg_u32 s21, 0
        s_cbranch_scc1 SP_L""")
        ldr=lambda r:ld.replace(f"v{PL},",f"v{PL+r},")
        for r in range(3): a(ldr(r)+"\ns_sleep 2")
        a("SP_A:")
        for r in range(4): a(ldr((r+3)%4)+f"\ns_waitcnt vmcnt(3)\nv_cmp_ne_u32 vcc, s99, v{PL+r}\ns_cbranch_vccz SP_A_OK")
        a("s_add_u32 s97, s97, 1\ns_cmp_lt_u32 s97, 0x40000\ns_cbranch_scc1 SP_A\nSP_A_OK:")
        a(f"ds_write_b32 v3, v3\ns_branch SP_L_OK")
        spin("SP_L",f"ds_read_b32 v{PL}, v3\ns_waitcnt lgkmcnt(0)",f"v_cmp_eq_u32 vcc, 0, v{PL}")
        for i in range(2): a(f"s_add_u32 m0, s24, {QL+i*1024}\ns_add_u32 s27, s22, {i*1024}\nbuffer_load_dwordx4 v13, s[56:59], s27 offen sc1 lds")
        for c in range(1):
            for i in range(4):
                a(f"s_add_u32 m0, s36, {KB+c*16384+i*1024}\ns_add_u32 s27, s36, {WS_K+c*16384+i*1024}\nbuffer_load_dwordx4 v13, s[56:59], s27 offen sc1 lds")
                a(f"s_add_u32 m0, s26, {VB+(c*16+i)*VS}\ns_add_u32 s27, s36, {WS_V+c*16384+i*1024}\nbuffer_load_dwordx4 v13, s[56:59], s27 offen sc1 lds")
    k1.gen(a,tail)
    a("K2_START:"); ts(a,3)
    a(f"""s_load_dwordx2 s[4:5], s[0:1], 32
    s_load_dwordx4 s[8:11], s[0:1], 64
    s_mov_b32 s21, s67
    s_lshl_b32 s22, s74, 1
    s_and_b32 s24, s75, 1
    s_add_u32 s22, s22, s24
    s_lshl_b32 s22, s22, 2
    s_lshr_b32 s24, s75, 1
    s_add_u32 s22, s22, s24
    s_lshl_b32 s22, s22, 3
    s_add_u32 s22, s22, s21
    s_lshl_b32 s22, s22, 10
    s_lshl_b32 s24, s75, 3
    s_add_u32 s24, s24, s21
    s_lshl_b32 s24, s24, 5
    s_add_u32 s24, s24, s74
    s_lshl_b32 s24, s24, 10
    v_and_b32 v2, 15, v0
    v_lshrrev_b32 v3, 5, v0
    v_lshl_add_u32 v4, v3, 6, v2
    v_lshlrev_b32 v14, 1, v4
    v_lshlrev_b32 v12, 3, v0
    v_bfe_u32 v6, v0, 4, 1
    v_cmp_eq_u32 s[70:71], 1, v6
    v_lshl_add_u32 v7, v3, 4, v2
    v_lshlrev_b32 v7, 4, v7
    v_add_u32 v8, 512, v7
    v_mov_b32 v9, 1024
    v_cndmask_b32 v10, v7, v9, s[70:71]
    v_cndmask_b32 v11, v8, v9, s[70:71]
    v_add_u32 v10, {VB}, v10
    v_add_u32 v11, {VB}, v11
    v_mul_u32_u24 v9, 0x8000, v6
    v_lshl_or_b32 v9, v9, 16, v9
    v_mov_b32 v{IDX}, 0xdddddddd
    s_mov_b32 s72, {LOG2E}
    s_mov_b32 s73, {LOG2E}
    s_lshl_b32 s27, s21, 10
    s_add_u32 s27, s27, {QL}
    v_add_u32 v2, s27, v13
    v_mov_b32 v1, {FLDS-8}
    ds_read_b32 v1, v1
    s_and_b32 s28, s2, 63
    s_lshl_b32 s28, s28, 10
    s_add_u32 s28, s28, {WS_F1}""")
    for r in range(16): a(f"v_mov_b32 v{O+r}, 0")
    a("s_cmp_lt_u32 s21, 4\ns_cbranch_scc1 K2_E\ns_waitcnt vmcnt(0)\nK2_E:\ns_waitcnt lgkmcnt(0)\ns_barrier"); ts(a,4); ts(a,1,3)
    a('v_readfirstlane_b32 s99, v1')
    srd(a,40,4,0x80000); srd(a,44,8,0x80000); srd(a,48,10,0x400000)
    rk=lambda t:f"ds_read_b128 {R(KF,4)}, v13 offset:{KB+t*1024}"
    rv=lambda t,g:f"ds_read_b128 {R(V1 if g else V0,4)}, v{10+g} offset:{t*VS}"
    sm=lambda v,p:f"v_smfmac_f32_32x32x32_bf16 {R(O,16)}, {R(v,4)}, {R(p,8)}, v{IDX}"
    a(f"ds_read_b128 {R(Q,4)}, v2"); a(rk(0)); a("s_waitcnt lgkmcnt(0)"); a(mfma(S[0],KF,Q,'0')); a(rk(1)); a(rv(0,0)); a("s_nop 7\ns_nop 1")
    ldB=f"buffer_load_dwordx4 {R(PL,4)}, v13, s[56:59], s28 offen sc1"
    SCH={}
    def sched(L,i0,per,step=1):
        for k,x in enumerate(L): SCH.setdefault(i0+(k//per)*step,[]).append(x)
    a(f"s_lshl_b32 s60, s21, 11\ns_mul_i32 s61, s21, {2*VS}")
    L=[]
    for c in range(1,4):
        for i in range(2):
            L.append(f"s_add_u32 m0, s60, {KB+c*16384+i*1024}\ns_add_u32 s27, s60, {WS_K+c*16384+i*1024}\nbuffer_load_dwordx4 v13, s[56:59], s27 offen sc1 lds")
            L.append(f"s_add_u32 m0, s61, {VB+(c*16+i)*VS}\ns_add_u32 s27, s60, {WS_V+c*16384+i*1024}\nbuffer_load_dwordx4 v13, s[56:59], s27 offen sc1 lds")
    sched(L,0,2)
    def bloads():
        a("s_waitcnt vmcnt(0)"); spin("SP_B",ldB,"\n".join(f"v_xor_b32 v{PL+r}, s99, v{PL+r}" for r in range(4))+f"\nv_or3_b32 v{PL}, v{PL}, v{PL+1}, v{PL+2}\nv_or_b32 v{PL}, v{PL}, v{PL+3}\nv_cmp_ne_u32 vcc, 0, v{PL}")
        a(f"s_add_u32 s27, s24, {WS_QB}\nbuffer_load_dwordx4 {R(QB,4)}, v13, s[56:59], s27 offen sc1\ns_lshl_b32 s62, s74, 9")
        b=Asm(); load_wphi(b,PQ,14,52,'s62'); sched(b.l,19,2)
        a(f"s_lshl_b32 s27, s74, 16\ns_lshl_b32 s28, s21, 9\ns_add_u32 s27, s27, s28\ns_add_u32 s27, s27, {WS_KVP}")
        sched([f"buffer_load_dwordx2 {R(KP+2*p,2)}, v12, s[56:59], s27 offen sc1\ns_add_u32 s27, s27, 4096" for p in range(16)],11,2)
    def bside1():
        a("s_waitcnt vmcnt(0)"); pack_wphi(a,WP,PQ,4,9)
        a("s_nop 1"); a(mfma(PQ,WP,QB,'0'))
        st=16
        while st>=2:
            for p in range(0,st,2): a(f"v_pk_add_f32 {R(KP+p,2)}, {R(KP+p,2)}, {R(KP+st+p,2)}")
            st//=2
        a(f"""v_cvt_pk_bf16_f32 v{KP}, v{KP}, v{KP+1}
        s_lshl_b32 s27, s21, 2
        s_and_b32 s28, s27, 12
        s_lshr_b32 s27, s21, 2
        s_lshl_b32 s27, s27, 10
        s_add_u32 s27, s27, s28
        s_add_u32 s27, s27, {RB}
        v_add_u32 v2, s27, v13
        ds_write_b32 v2, v{KP}""")
        softmax_multi(a,[PQ],T,72); cvt(a,PQ,PQ,8)
        a("s_waitcnt lgkmcnt(0)")
    def bside2():
        a(f"v_add_u32 v2, {RB}, v13\nds_read_b128 {R(KVF,4)}, v2\nds_read_b128 {R(KVF+4,4)}, v2 offset:1024\ns_waitcnt lgkmcnt(0)")
        a(mfma(KP,KVF,PQ,'0')); a(mfma(KP,KVF+4,PQ+4,KP))
    def bside3():
        a(f"v_add_f32 v{KP+8}, 0x358637bd, v{KP+8}\nv_rcp_f32 v{KP+8}, v{KP+8}\ns_add_u32 s27, s24, {WS_O+0x200000}")
        for p in range(4): a(f"v_pk_mul_f32 {R(KP+2*p,2)}, {R(KP+2*p,2)}, {R(KP+8,2)} op_sel_hi:[1,0]")
        cvt(a,KP,KP,4)
        a(f"buffer_store_dwordx4 {R(KP,4)}, v13, s[56:59], s27 offen sc1")
    def flag(l,hi,sh,lo,base,n):
        a(f"""s_cmp_lg_u32 s21, 4
        s_cbranch_scc1 {l}
        s_lshl_b32 s68, s{hi}, {sh+7}
        s_lshl_b32 s69, s{lo}, 2
        s_add_u32 s68, s68, s69
        s_add_u32 s68, s68, {base}
        v_lshrrev_b32 v3, {sh}, v0
        v_lshlrev_b32 v3, 24, v3
        v_lshl_add_u32 v3, v0, 7, v3
        v_mov_b32 v2, s99
        buffer_store_dword v2, v3, s[56:59], s68 offen sc1
        {l}:""")
    def woloads():
        a(f"""v_lshrrev_b32 v2, 3, v0
        v_and_b32 v3, 7, v0
        v_lshlrev_b32 v4, 2, v6
        v_xor_b32 v3, v3, v4
        v_lshlrev_b32 v3, 4, v3
        v_lshl_add_u32 v4, v2, 10, v3
        s_lshl_b32 s64, s21, 16
        s_lshl_b32 s28, s75, 7
        s_add_u32 s64, s64, s28
        s_lshr_b32 s30, s21, 2
        s_lshl_b32 s31, s30, 16
        s_and_b32 s25, s21, 3
        s_lshl_b32 s25, s25, 13
        s_add_u32 s25, s25, s31
        s_lshl_b32 s26, s30, 9
        s_add_u32 s26, s26, 32768""")
        sched([f"s_add_u32 s65, s64, {i*8192}\nbuffer_load_dwordx4 {R(WA+4*i,4)}, v4, s[40:43], s65 offen" for i in range(8)],11,1)
        sched([f"s_add_u32 m0, s25, {i*1024}\ns_add_u32 s65, s64, {i*8192}\nbuffer_load_dwordx4 v4, s[44:47], s65 offen lds" for i in range(8)],36,1)
    def pol():
        a(f"""s_lshl_b32 s28, s74, 3
        s_add_u32 s28, s28, s75
        s_lshl_b32 s28, s28, 7
        s_add_u32 s28, s28, {WS_FB}
        v_and_b32 v1, 31, v0
        v_lshlrev_b32 v1, 2, v1
        s_lshl_b32 s29, s74, 1
        s_and_b32 s32, s21, 1
        s_add_u32 s33, s29, s32
        s_lshl_b32 s29, s33, 2
        s_lshr_b32 s32, s21, 1
        s_add_u32 s29, s29, s32
        s_lshl_b32 s29, s29, 13
        s_add_u32 s29, s29, {WS_O}""")
    ldF=f"buffer_load_dword v{PL}, v1, s[56:59], s28 offen sc1"
    chkF=f"v_cmp_ne_u32 vcc, s99, v{PL}"
    def oloads(d,off,a=a):
        for k in range(8):
            a((f"s_add_u32 s27, s29, {off+k*1024}\n" if k%4==0 else "")+f"buffer_load_dwordx4 {R(d+4*k,4)}, v13, s[56:59], s27 offen offset:{(k%4)*1024} sc1")
    for i in range(64):
        s=S[i&1]; n=S[1-(i&1)]
        if PROF==4 and i in (16,26): a(f"s_memtime s[{82+(i==26)*2}:{83+(i==26)*2}]\ns_memrealtime s[{86+(i==26)*2}:{87+(i==26)*2}]\ns_waitcnt lgkmcnt(0)")
        if PROF==4 and i==27: a("s_sub_u32 s82, s84, s82\ns_add_u32 s82, s82, s80\ns_sub_u32 s84, s88, s86\ns_add_u32 s84, s84, s80")
        for seg in ((0,6,10,12),(14,21,26,29),(30,32,34,35),(36,50,58,62)):
            if PRIO and i in seg: a(f"s_setprio {3-seg.index(i)}")
        if i==6: a(ldB)
        if i==10: ts(a,2,3); bloads(); woloads()
        if i==14: a("s_barrier")
        if i==28: ts(a,3,3); bside1()
        if i==30: a("s_barrier"); bside2()
        if i==32: bside3(); ts(a,4,3)
        if i==36: a("s_waitcnt vmcnt(0)\ns_barrier"); flag("FL_B",75,5,74,WS_FB,32); pol(); ts(a,5,3)
        if i==44: a(ldF)
        if i==49:
            a("s_waitcnt vmcnt(0)"); spin("SP_F",ldF,chkF); ts(a,6,3)
            L=[]; oloads(OB,0x200000,L.append); sched(L,50,1)
        X=SCH.get(i,[])
        E=lambda x,y:[a(f"v_exp_f32 v{s+r}, v{s+r}") for r in range(x,y)]
        E(0,2)
        if i>0: a(f"s_waitcnt lgkmcnt({2 if i<63 else 1})"); a(sm(V1,n+8))
        a(rv(i,1))
        if X: a(X.pop(0))
        E(2,5)
        if i<63:
            a("s_waitcnt lgkmcnt(2)"); a(mfma(n,KF,Q,'0'))
            if i<62: a(rk(i+2))
        if X: a(X.pop(0))
        E(5,10)
        a(f"s_waitcnt lgkmcnt({2 if i<62 else 1})"); a(sm(V0,s))
        if i<63: a(rv(i+1,0))
        if X: a(X.pop(0))
        assert not X
        E(10,16)
    a("s_waitcnt lgkmcnt(0)\ns_nop 0"); a(sm(V1,S[1]+8)); ts(a,5)
    a(f"""v_lshrrev_b32 v3, 5, v0
    v_bfe_u32 v4, v0, 2, 2
    v_lshl_add_u32 v5, v3, 2, v4
    v_bfe_u32 v7, v0, 1, 1
    v_lshl_add_u32 v7, v6, 1, v7
    s_bfe_u32 s34, s21, 0x10001
    v_bfe_u32 v8, v0, 3, 1
    s_lshl_b32 s34, s34, 14
    s_add_u32 s31, s31, s34
    v_lshl_add_u32 v7, v8, 2, v7
    v_lshlrev_b32 v7, 4, v7
    v_and_b32 v8, 1, v0
    v_lshl_add_u32 v7, v8, 3, v7
    v_lshl_add_u32 v7, v5, 7, v7
    v_mov_b32 v2, 0x1f800000
    v_mov_b32 v4, 0x5f800000
    v_cmp_nge_f32 vcc, v{O+8}, v2
    v_cmp_nle_f32 s[36:37], v{O+8}, v4
    s_or_b64 vcc, vcc, s[36:37]
    s_cbranch_vccnz K2_MAX
    K2_FIN:
    v_rcp_f32 v{O+8}, v{O+8}
    s_add_u32 s27, s22, {WS_O}""")
    for p in range(4): a(f"v_pk_mul_f32 {R(O+2*p,2)}, {R(O+2*p,2)}, {R(O+8,2)} op_sel_hi:[1,0]")
    cvt(a,O,O,4)
    a(f"""buffer_store_dwordx4 {R(O,4)}, v13, s[56:59], s27 offen sc1
    v_add_u32 v24, s31, v7
    v_xor_b32 v25, 64, v24
    s_add_u32 s25, s25, s26
    v_add_u32 v26, s25, v13
    s_and_b32 s34, s21, 1
    s_lshl_b32 s34, s34, 16
    s_lshl_b32 s35, s32, 11
    s_add_u32 s35, s35, s34
    v_add_u32 v27, s35, v13
    s_lshl_b32 s35, s32, 13
    s_add_u32 s35, s35, s34
    v_add_u32 v28, s35, v13
    v_and_b32 v2, 31, v0
    v_lshlrev_b32 v2, 11, v2
    v_lshl_add_u32 v14, v3, 4, v2
    s_lshl_b32 s63, s33, 16
    s_lshl_b32 s35, s75, 7
    s_add_u32 s63, s63, s35
    s_lshl_b32 s35, s32, 5
    s_add_u32 s63, s63, s35
    s_sub_u32 s28, s28, {WS_FB-WS_FA}
    v_and_b32 v1, 28, v1""")
    ACC=32; WF=68; RX=96
    def proj(of,wait,mid=''):
        rd=lambda m:[a(f"ds_read_b64_tr_b16 {R(WF+4*(m%3)+2*t,2)}, v{24+(m&1)} offset:{(16*(m>>1)+8*t)*128}") for t in range(2)]
        rd(0); rd(1)
        for m in range(16):
            if m<14: rd(m+2)
            if m==6: a(mid)
            a(f"s_waitcnt lgkmcnt({min(4,2*(15-m))})"+(f" vmcnt({7-(m>>1)})" if wait and not m&1 else ""))
            d=ACC+16*(m&1); a(mfma(d,WF+4*(m%3),of+4*(m>>1),'0' if m<2 else d))
    def xchg(d):
        a("s_barrier\ns_nop 7\ns_nop 1")
        for q in range(8): a(f"ds_write_b128 v27, {R(ACC+4*q,4)} offset:{(q>>1)*8192+(q&1)*1024}")
        a("s_waitcnt lgkmcnt(0)\ns_barrier")
        for q in range(8): a(f"ds_read_b128 {R(RX+4*q,4)}, v28 offset:{q*1024}")
        for h in range(2):
            a(f"s_waitcnt lgkmcnt({4-4*h})")
            for p in range(4): a(f"v_pk_add_f32 {R(RX+16*h+2*p,2)}, {R(RX+16*h+2*p,2)}, {R(RX+16*h+8+2*p,2)}")
        for p in range(4): a(f"v_pk_add_f32 {R(RX+2*p,2)}, {R(RX+2*p,2)}, {R(RX+16+2*p,2)}")
        cvt(a,d,RX,4); a(f"s_nop 1\nv_permlane32_swap_b32 v{d}, v{d+2}\nv_permlane32_swap_b32 v{d+1}, v{d+3}")
    a("s_waitcnt vmcnt(0)\ns_barrier"); flag("FL_A",74,3,75,WS_FA,8); ts(a,6)
    for i in range(8): a(f"ds_write_b128 v26, {R(WA+4*i,4)} offset:{i*1024}")
    proj(OB,False,ldF)
    a("s_waitcnt vmcnt(0)"); spin("SP_G",ldF,chkF); oloads(OA,0)
    xchg(20)
    a("v_add_u32 v24, s26, v24\nv_add_u32 v25, s26, v25")
    proj(OA,True)
    a(f"buffer_store_dwordx4 v[20:23], v14, s[48:51], s63 offen offset:1024 {OST}"); xchg(16)
    a(f"buffer_store_dwordx4 v[16:19], v14, s[48:51], s63 offen {OST}")
    tsend(a,0,7)
    a("K_END:\ns_endpgm")
    C=16; SS=32
    a(f"""K2_MAX:
    s_mov_b32 s27, {WS_K}
    v_mov_b32 v4, 0xff800000
    K2_MAXL:
    buffer_load_dwordx4 {R(KF,4)}, v13, s[56:59], s27 offen sc1
    s_waitcnt vmcnt(0)""")
    a(mfma(SS,KF,Q,'0')); a("s_nop 7\ns_nop 4")
    for r in range(8): a(f"v_max3_f32 v4, v4, v{SS+2*r}, v{SS+2*r+1}")
    a(f"""s_add_u32 s27, s27, 1024
    s_cmp_lt_u32 s27, {WS_K+65536}
    s_cbranch_scc1 K2_MAXL
    v_mov_b32 v2, v4
    s_nop 1
    v_permlane32_swap_b32 v2, v4
    s_nop 1
    v_max_f32 v4, v2, v4
    v_subrev_u32 v2, {VB}, v10
    v_mov_b32 v8, 0x3f803f80
    s_mov_b32 s27, {WS_K}""")
    for r in range(16): a(f"v_sub_f32 v{C+r}, 0, v4\nv_mov_b32 v{O+r}, 0")
    a(f"""K2_SUML:
    s_add_u32 s35, s27, {WS_V-WS_K}
    buffer_load_dwordx4 {R(KF,4)}, v13, s[56:59], s27 offen sc1
    buffer_load_dwordx4 {R(V0,4)}, v2, s[56:59], s35 offen sc1
    buffer_load_dwordx4 {R(V1,4)}, v2, s[56:59], s35 offen offset:512 sc1
    s_waitcnt vmcnt(0)""")
    a(mfma(SS,KF,Q,C))
    for r in range(8): a(f"v_cndmask_b32 v{V0+r}, v{V0+r}, v8, s[70:71]")
    a("s_nop 4")
    for r in range(16): a(f"v_exp_f32 v{SS+r}, v{SS+r}")
    a("s_nop 1"); a(sm(V0,SS)); a(sm(V1,SS+8))
    a(f"s_add_u32 s27, s27, 1024\ns_cmp_lt_u32 s27, {WS_K+65536}\ns_nop 7\ns_nop 4\ns_cbranch_scc1 K2_SUML\ns_branch K2_FIN")
    return a.text()
```
